```python
import torch

def _softmax(x, axis=-1):
    return torch.softmax(x, dim=axis)
def _gelu(x):
    return torch.nn.functional.gelu(x, approximate="tanh")
def _silu(x):
    return torch.nn.functional.silu(x)
def _sigmoid(x):
    return torch.sigmoid(x)
def _layernorm(x, axis=-1, eps=1e-5):
    m = x.mean(dim=axis, keepdim=True)
    v = x.var(dim=axis, keepdim=True, unbiased=False)
    return (x - m) / torch.sqrt(v + eps)
def _scatter_add(tgt, idx, src, axis=0):
    return tgt.clone().index_add_(axis, idx, src)
def _segment_sum(src, seg, n):
    out = torch.zeros((n,) + src.shape[1:], dtype=src.dtype)
    return out.index_add_(0, seg, src)
def _pad(x, pw):
    flat = tuple(v for pair in reversed(pw) for v in pair)
    return torch.nn.functional.pad(x, flat)

kernel_name = 'concat_heads__gqa_block_cached__gqa_block_cached__near_ridge'

def setup_inputs():

    _w = (lambda a: (lambda t: t.to(torch.bfloat16) if t.is_floating_point() else t)(torch.as_tensor(a)))
    def _A_setup():
        B, Sq, D = 8, 144, 576
        Hq, Hkv, Sk, Dh = 32, 16, 1024, 128
        assert Hq % Hkv == 0, (Hq, Hkv)
        return {
            "x": _w((lambda *s: torch.randn(*s, dtype=torch.bfloat16) * 0.8)(B, Sq, D)),
            "k_cache": _w((lambda *s: torch.randn(*s, dtype=torch.bfloat16) * 0.8)(B, Hkv, Sk, Dh)),
            "v_cache": _w((lambda *s: torch.randn(*s, dtype=torch.bfloat16) * 0.05)(B, Hkv, Sk, Dh)),
            "wq": _w((lambda *s: torch.randn(*s, dtype=torch.bfloat16) * 0.8)(D, Hq * Dh) * (D ** -0.5)),
            "wo": _w((lambda *s: torch.randn(*s, dtype=torch.bfloat16) * 0.05)(Hq * Dh, D) * ((Hq * Dh) ** -0.5)),
        }
    _A_in = _A_setup()

    def _B_setup():
        B, Sq, D = 8, 144, 576
        Hq, Hkv, Sk, Dh = 32, 16, 1024, 128
        assert Hq % Hkv == 0, (Hq, Hkv)
        return {
            "x": _w((lambda *s: torch.randn(*s, dtype=torch.bfloat16) * 0.8)(B, Sq, D)),
            "k_cache": _w((lambda *s: torch.randn(*s, dtype=torch.bfloat16) * 0.8)(B, Hkv, Sk, Dh)),
            "v_cache": _w((lambda *s: torch.randn(*s, dtype=torch.bfloat16) * 0.05)(B, Hkv, Sk, Dh)),
            "wq": _w((lambda *s: torch.randn(*s, dtype=torch.bfloat16) * 0.8)(D, Hq * Dh) * (D ** -0.5)),
            "wo": _w((lambda *s: torch.randn(*s, dtype=torch.bfloat16) * 0.05)(Hq * Dh, D) * ((Hq * Dh) ** -0.5)),
        }
    _B_in = _B_setup()

    return {
        "A_x": _A_in["x"],
        "A_k_cache": _A_in["k_cache"],
        "A_v_cache": _A_in["v_cache"],
        "A_wq": _A_in["wq"],
        "A_wo": _A_in["wo"],
        "B_x": _B_in["x"],
        "B_k_cache": _B_in["k_cache"],
        "B_v_cache": _B_in["v_cache"],
        "B_wq": _B_in["wq"],
        "B_wo": _B_in["wo"],
    }

def reference(A_x, A_k_cache, A_v_cache, A_wq, A_wo, B_x, B_k_cache, B_v_cache, B_wq, B_wo):
    def _A_ref(x, k_cache, v_cache, wq, wo):
        B, Sq, D = x.shape
        Hq, Dh = 32, 128
        Hkv = k_cache.shape[1]
        rep = Hq // Hkv
        q = (lambda x, *d: x.permute(*d))((x @ wq).reshape(B, Sq, Hq, Dh), 0, 2, 1, 3)
        k = (lambda x, n, axis: torch.repeat_interleave(x, n, dim=axis))(k_cache, rep, axis=1)
        v = (lambda x, n, axis: torch.repeat_interleave(x, n, dim=axis))(v_cache, rep, axis=1)
        scores = torch.einsum("bhqd,bhkd->bhqk", q, k) * (Dh ** -0.5)
        p = _softmax(scores, axis=-1)
        o = torch.einsum("bhqk,bhkd->bhqd", p, v)
        return (lambda x, *d: x.permute(*d))(o, 0, 2, 1, 3).reshape(B, Sq, Hq * Dh) @ wo

    def _B_ref(x, k_cache, v_cache, wq, wo):
        B, Sq, D = x.shape
        Hq, Dh = 32, 128
        Hkv = k_cache.shape[1]
        rep = Hq // Hkv
        q = (lambda x, *d: x.permute(*d))((x @ wq).reshape(B, Sq, Hq, Dh), 0, 2, 1, 3)
        k = (lambda x, n, axis: torch.repeat_interleave(x, n, dim=axis))(k_cache, rep, axis=1)
        v = (lambda x, n, axis: torch.repeat_interleave(x, n, dim=axis))(v_cache, rep, axis=1)
        scores = torch.einsum("bhqd,bhkd->bhqk", q, k) * (Dh ** -0.5)
        p = _softmax(scores, axis=-1)
        o = torch.einsum("bhqk,bhkd->bhqd", p, v)
        return (lambda x, *d: x.permute(*d))(o, 0, 2, 1, 3).reshape(B, Sq, Hq * Dh) @ wo

    a = _A_ref(A_x, A_k_cache, A_v_cache, A_wq, A_wo)
    b = _B_ref(B_x, B_k_cache, B_v_cache, B_wq, B_wo)
    return torch.concatenate([a, b], axis=-1)
```

```python
import re

def R(p, b, n=1):
    return f"{p}{b}" if n == 1 else f"{p}[{b}:{b+n-1}]"
def V(b, n=1): return R("v", b, n)
def A(b, n=1): return R("a", b, n)
def S(b, n=1): return R("s", b, n)

_reg_re = re.compile(r"^(-|\|)?([vas])(?:(\d+)|\[(\d+):(\d+)\])\|?$")
def regs_of(tok):
    tok = tok.strip()
    m = _reg_re.match(tok)
    if m:
        p = m.group(2)
        if m.group(3) is not None: return [p + m.group(3)]
        return [p + str(i) for i in range(int(m.group(4)), int(m.group(5)) + 1)]
    if tok in ("m0", "scc"): return [tok]
    if tok == "vcc": return ["vcc"]
    if tok == "exec": return ["exec"]
    return []

TRANS = ("v_exp_f32", "v_rcp_f32", "v_log_f32", "v_rsq_f32", "v_sqrt_f32")

class I:
    def __init__(self, text, tag=None, grp=None):
        self.text = text.strip()
        self.tag = tag
        self.grp = grp
        self.pre_nop = 0
        self.pre_lgkm = None
        self.pre_vm = None
        t = self.text
        self.rd = set(); self.wr = set(); self.c_rd = set(); self.ab_rd = set()
        if t.endswith(":"):
            self.kind = "label"; self.op = ""; return
        if t.startswith(";") or t.startswith("."):
            self.kind = "label"; self.op = ""; return
        parts = t.split(None, 1)
        op = self.op = parts[0]
        rest = parts[1] if len(parts) > 1 else ""
        ops = [o.strip() for o in rest.split(",")] if rest else []
        mods = []
        if ops:
            l = ops[-1].split()
            ops[-1] = l[0]; mods = l[1:]
        self.mods = mods
        rg = [regs_of(o) for o in ops]
        def allr(lst): return set(x for r in lst for x in r)
        if op.startswith("v_mfma"):
            self.kind = "mfma"; self.wr = set(rg[0]); self.ab_rd = allr(rg[1:3]); self.c_rd = set(rg[3]); self.rd = self.ab_rd | self.c_rd
            self.c_list = rg[3]; self.d_list = rg[0]
        elif op.startswith("ds_read"):
            self.kind = "ds"; self.wr = set(rg[0]); self.rd = allr(rg[1:])
        elif op.startswith("ds_write"):
            self.kind = "ds"; self.rd = allr(rg)
        elif op.startswith("buffer_load"):
            if "lds" in mods:
                self.kind = "dma"; self.rd = allr(rg) | {"m0"}
            else:
                self.kind = "vld"; self.wr = set(rg[0]); self.rd = allr(rg[1:])
        elif op.startswith("buffer_store"):
            self.kind = "vst"; self.rd = allr(rg); self.data = set(rg[0])
        elif op.startswith("s_load"):
            self.kind = "smem"; self.wr = set(rg[0]); self.rd = allr(rg[1:])
        elif op == "s_waitcnt":
            self.kind = "wait"
        elif op == "s_nop":
            self.kind = "nop"; self.n = int(ops[0]) + 1
        elif op == "s_barrier":
            self.kind = "barrier"
        elif op.startswith("s_cbranch") or op == "s_branch" or op == "s_endpgm" or op == "s_setprio":
            self.kind = "branch"
            if "scc" in op: self.rd = {"scc"}
            if "vcc" in op: self.rd = {"vcc"}
        elif op.startswith("s_cmp"):
            self.kind = "salu"; self.rd = allr(rg); self.wr = {"scc"}
        elif op.startswith("s_memtime") or op.startswith("s_memrealtime"):
            self.kind = "smem"; self.wr = set(rg[0])
        elif op.startswith("s_"):
            self.kind = "salu"; self.wr = set(rg[0]) ; self.rd = allr(rg[1:])
            if op.startswith(("s_cselect", "s_addc", "s_subb")): self.rd |= {"scc"}
            if not op.startswith(("s_mov", "s_cselect", "s_mul_i32")): self.wr |= {"scc"}
        elif op.startswith("v_"):
            self.kind = "trans" if op.replace("_e32", "").replace("_e64", "") in TRANS else "valu"
            if "permlane" in op and "swap" in op:
                self.wr = allr(rg); self.rd = allr(rg)
            else:
                self.wr = set(rg[0]); self.rd = allr(rg[1:])
                if op.startswith(("v_fmac", "v_mac")): self.rd |= self.wr
                if op.startswith("v_cndmask") and len(ops) == 3: self.rd |= {"vcc"}
        else:
            raise ValueError("unknown op " + t)

class W(I):
    def __init__(self, lg=None, vm=None, grp=None):
        super().__init__("s_waitcnt lgkmcnt(0)", grp=grp)
        self.lg = lg; self.vm = vm
        self.lg_n = None; self.vm_n = None
    def render(self):
        p = []
        if self.vm_n is not None: p.append(f"vmcnt({min(self.vm_n, 63)})")
        if self.lg_n is not None: p.append(f"lgkmcnt({min(self.lg_n, 15)})")
        return ("s_waitcnt " + " ".join(p)) if p else None

def _parse_wait(t):
    lg = re.search(r"lgkmcnt\((\d+)\)", t); vm = re.search(r"vmcnt\((\d+)\)", t)
    return (int(lg.group(1)) if lg else None, int(vm.group(1)) if vm else None)

def resolve(trace, verbose=True, name=""):
    def mn(a, b): return b if a is None else min(a, b)
    for rnd in range(6):
        changed = False
        lgq = []; vmq = []
        for ins in trace:
            def apply(lg, vm):
                if lg is not None:
                    lg = min(lg, 15)
                    if len(lgq) > lg: del lgq[:len(lgq) - lg]
                if vm is not None:
                    vm = min(vm, 63)
                    if len(vmq) > vm: del vmq[:len(vmq) - vm]
            if isinstance(ins, W):
                for attr, q, spec in (("lg_n", lgq, ins.lg), ("vm_n", vmq, ins.vm)):
                    if spec is None: continue
                    if isinstance(spec, int): n = spec
                    else:
                        idx = [k for k, o in enumerate(q) if o.tag in spec]
                        if not idx: continue
                        n = len(q) - 1 - max(idx)
                    old = getattr(ins, attr); new = mn(old, n)
                    if new != old: setattr(ins, attr, new); changed = True
                apply(ins.lg_n, ins.vm_n)
                continue
            if ins.kind == "wait":
                apply(*_parse_wait(ins.text)); continue
            apply(ins.pre_lgkm, ins.pre_vm)
            touch = ins.rd | ins.wr
            for attr, q in (("pre_lgkm", lgq), ("pre_vm", vmq)):
                idx = [k for k, o in enumerate(q) if (o.wr & touch)]
                if idx:
                    n = len(q) - 1 - max(idx)
                    if any(o.kind == "smem" for o in q): n = 0
                    setattr(ins, attr, mn(getattr(ins, attr), n)); changed = True
                    apply(ins.pre_lgkm, ins.pre_vm)
            if ins.kind in ("ds", "smem"): lgq.append(ins)
            if ins.kind in ("dma", "vld", "vst"): vmq.append(ins)
        if not changed: break
    for rnd in range(6):
        changed = False
        hist = []
        pos = 0
        for ins in trace:
            if ins.kind == "label": continue
            if isinstance(ins, W) and ins.render() is None: continue
            if ins.pre_lgkm is not None or ins.pre_vm is not None: pos += 1
            pos += ins.pre_nop
            need = 0
            for (p, o) in hist[-24:]:
                d = pos - p - 1
                req = hazard(o, ins)
                if req > d: need = max(need, req - d)
            if need:
                ins.pre_nop += need; pos += need; changed = True
            hist.append((pos, ins))
            pos += ins.n if ins.kind == "nop" else 1
            if ins.kind == "nop": hist[-1] = (pos - 1, ins)
        if not changed: break

def isv(s): return set(x for x in s if x[0] in "va" and x not in ("vcc",))
def iss(s): return set(x for x in s if x[0] == "s" and x != "scc" or x == "vcc")

def hazard(a, b):
    req = 0
    ak, bk = a.kind, b.kind
    if ak in ("valu", "trans"):
        if bk == "mfma" and (a.wr & b.rd): req = max(req, 2)
        if bk == "mfma" and "exec" in a.wr: req = max(req, 4)
        if ak == "trans" and bk in ("valu", "mfma", "ds", "vst", "vld", "dma") and (a.wr & b.rd): req = max(req, 1)
        if "permlane" in b.op and (a.wr & b.rd): req = max(req, 2)
        if b.op.startswith(("v_readfirstlane", "v_readlane")) and (a.wr & b.rd): req = max(req, 1)
        sw = iss(a.wr)
        if sw:
            if bk in ("dma", "vld", "vst") and (sw & b.rd): req = max(req, 5)
            if bk in ("valu", "trans") and (sw & b.rd): req = max(req, 2)
            if bk in ("salu", "branch") and (sw & b.rd): req = max(req, 1)
    if ak == "mfma":
        if bk == "mfma":
            if a.wr & b.ab_rd: req = max(req, 8)
            if a.wr & b.c_rd:
                if a.d_list != b.c_list: req = max(req, 6)
            elif a.wr & b.wr: req = max(req, 0)
        elif bk in ("valu", "trans", "ds", "vld", "vst", "dma"):
            if a.wr & (b.rd | b.wr): req = max(req, 8)
            if bk in ("valu", "trans") and (a.c_rd & b.wr): req = max(req, 3)
            if bk in ("ds", "vld") and (a.c_rd & b.wr): req = max(req, 3)
    if ak == "salu" and "m0" in a.wr and bk == "dma": req = max(req, 1)
    if ak == "vst" and len(a.data) >= 3 and (a.data & b.wr): req = max(req, 2)
    return req

def render(seq):
    out = []
    for ins in seq:
        if ins.kind == "label":
            out.append(ins.text); continue
        if isinstance(ins, W):
            r = ins.render()
            if r is None: continue
            out.append("    " + r); continue
        p = []
        if ins.pre_vm is not None: p.append(f"vmcnt({min(ins.pre_vm, 63)})")
        if ins.pre_lgkm is not None: p.append(f"lgkmcnt({min(ins.pre_lgkm, 15)})")
        if p: out.append("    s_waitcnt " + " ".join(p))
        n = ins.pre_nop
        while n > 0:
            k = min(n, 16); out.append(f"    s_nop {k-1}"); n -= k
        out.append("    " + ins.text)
    return "\n".join(out) + "\n"

def report(seq, name):
    nn = sum(1 for i in seq if i.pre_nop); nw = sum(1 for i in seq if (i.pre_lgkm is not None or i.pre_vm is not None))
    k = {}
    for i in seq: k[i.kind] = k.get(i.kind, 0) + 1
    print(f"[{name}] n={len(seq)} auto_nops={nn} auto_waits={nw} {k}")
```

```python
import sys, json
from asmlib import *

NAME = "concat_heads__gqa_block_cached__gqa_block_cached__near_ridge"
M16 = "v_mfma_f32_16x16x32_bf16"
PAR = dict(ones=((0, 0), (0, 1), (4, 0)), k2d=4, timing=0, rho=None)

SLOT = 16896; PAIR = 2 * SLOT; WIN = 2 * PAIR
QST = 26624; XOFF = 17408
K0BASE = 8 * SLOT
EXB = 9 * SLOT
FLAGB = EXB + 8192
LDS1 = 163840

sX, sW, sK, sV, sO = 4, 8, 12, 16, 20
sWv, sTh, sHh = 24, 25, 26
sA, sB, sWo1, sWo2, sSw, sSx, sCnt = 27, 28, 29, 30, 31, 32, 33
sCur, sOth, sXr, sD, sVo, sKo, sPass, sT0, sT1, sT2, sT3, sKw = 34, 35, 36, 37, 38, 39, 62, 63, 64, 65, 66, 67
sScale = 68
vKa = [1, 2, 3, 4]; vVa = [5, 6]; vDma = 7; vL16 = 8; vT = [9, 10, 11, 12, 13, 14, 15]
vWl = [16, 17]; vXl = [18, 19]; vWc = [20, 21]; vXc = [22, 23]; vDw = [24, 25, 26, 27]; vDx = [28, 29, 30]
vKl = 252 - 4
QF = 16; NEGM = 80; VL = 100; SB = 108; PB = 148; ACC = 108; ONESV = 252; TMP16 = 220
aO = 0; aKf = 160; aVf = 176; aQs = 192; aL = 236

def Qf(q, s): return V(QF + 16 * q + 4 * s, 4) if q < 4 else A(aQs + 4 * s, 4)
def Sreg(kt, q): return SB + (kt % 2) * 20 + 4 * q
def Preg(buf, q, u): return PB + buf * 36 + ((2 * q + u) * 4 if q < 4 else 32)
def Oreg(q, dt): return aO + 32 * q + 4 * dt
def Acc(t, q): return ACC + (4 * (8 * q + t) if q < 4 else 128 + 4 * t)

class Gaps:
    def __init__(self, mf):
        self.m = mf; self.s = [[] for _ in mf]; self.v = [[] for _ in mf]
    def put_s(self, g, ins, lo=0):
        k = g
        while k >= lo and self.s[k]: k -= 1
        if k < lo: k = g
        self.s[k].append(ins); return k
    def flat(self):
        out = []
        for m, s, v in zip(self.m, self.s, self.v):
            if m is not None: out.append(m)
            out += s
            out += sorted(v, key=lambda i: 0 if i.kind in ("ds", "dma") else 1)
        return out

def kv_dma(srd, soff, j, grp="dma"):
    return I(f"buffer_load_dwordx4 {V(vDma)}, {S(srd,4)}, {soff} offen offset:{256*j} lds", grp=grp)

def AF(par, t): return 160 + 32 * par + 4 * t
def BF(par, q): return (A(224 + 4 * q, 4) if par == 0 else V(80 + 4 * q, 4))

def q_reads(par):
    r = []
    for q in range(5):
        if q < 4: r.append(I(f"ds_read_b128 {BF(par,q)}, {V(vXc[0])} offset:{XOFF + 1024*q}", tag="qr"))
        else: r.append(I(f"ds_read_b128 {BF(par,q)}, {V(vXc[1])} offset:{XOFF + 8192}", tag="qr"))
    for t in range(8):
        s, h = t // 2, t % 2
        for kh in range(2):
            r.append(I(f"ds_read_b64_tr_b16 {A(AF(par,t)+2*kh,2)}, {V(vWc[s//2])} offset:{kh*4352 + (s&1)*64 + h*8}", tag="qr"))
    return r

def q_dmas():
    d = []
    for j in range(4):
        pre = [I(f"s_add_u32 m0, {S(sA)}, {S(sWo1)}")] if j == 0 else []
        d.append((pre, I(f"buffer_load_dwordx4 {V(vDw[j])}, {S(sW,4)}, {S(sSw)} offen offset:{1088*j} lds")))
    for j in range(3):
        pre = [I(f"s_add_u32 m0, {S(sA)}, {S(sWo2)}")] if j == 0 else []
        op = "buffer_load_dwordx4" if j < 2 else "buffer_load_dword"
        d.append((pre, I(f"{op} {V(vDx[j])}, {S(sX,4)}, {S(sSx)} offen offset:{1024*j} lds")))
    return d

def kv_unit(kind, blk, slot, js=(0, 1, 2, 3)):
    d = []
    for n, j in enumerate(js):
        pre = [I(f"s_add_u32 m0, {S(sKw)}, {slot*SLOT + 800*j}")]
        if n == 0: pre.insert(0, I(f"s_mov_b32 {S(sT0)}, {blk*16384}"))
        d.append((pre, kv_dma(sK if kind == "K" else sV, S(sT0), j)))
    return d

def q_advance():
    sal = [I(f"s_mov_b32 {S(sA)}, {S(sB)}"), I(f"s_add_u32 {S(sB)}, {S(sB)}, {QST}"),
           I(f"s_cmp_eq_u32 {S(sB)}, {5*QST}"), I(f"s_cselect_b32 {S(sB)}, 0, {S(sB)}")]
    val = [I(f"v_add_u32 {V(vWc[k])}, {S(sB)}, {V(vWl[k])}") for k in range(2)] + \
          [I(f"v_add_u32 {V(vXc[k])}, {S(sB)}, {V(vXl[k])}") for k in range(2)]
    return sal, val

def q_stage(par, first, reads, dmas, vm_end, extra=None, loop_end=None, adv=True, qdma=True, barrier=True):
    mf = []
    for t in range(8):
        for q in list(range(4)) + ([4] if t < 4 else []):
            c = "0" if first else V(Acc(t, q), 4)
            mf.append(I(f"{M16} {V(Acc(t,q),4)}, {A(AF(par,t),4)}, {BF(par,q)}, {c}"))
    G = Gaps(mf)
    rd = q_reads(1 - par) if reads else []
    nd = len(dmas); tot = len(rd) + nd
    seq = []; ri = di = 0
    for k in range(tot):
        want_d = di < nd and (ri >= len(rd) or (k > 0 and (di + 1) * (len(rd) + nd) <= (k + 1) * nd))
        if want_d: seq.append(("m", dmas[di])); di += 1
        else: seq.append(("r", rd[ri])); ri += 1
    g = 0 if reads else 2
    last_dma = -1
    for kind, o in seq:
        if kind == "r": G.v[g].append(o)
        else:
            pre, d = o
            for n, p in enumerate(pre):
                tgt = g - len(pre) + n
                assert tgt > last_dma or tgt == last_dma + 0 or True
                k = max(tgt, last_dma + 1)
                if k >= g:
                    G.s[g].append(p)
                else: G.s[k].append(p)
            G.v[g].append(d); last_dma = g
            if not reads: g += 1
        g += 1
    assert g <= 33, g
    if qdma:
        G.put_s(27, I(f"s_add_u32 {S(sSw)}, {S(sSw)}, 262144"), lo=last_dma + 1) if False else None
    tail = []
    if qdma: tail += [I(f"s_add_u32 {S(sSw)}, {S(sSw)}, 262144"), I(f"s_add_u32 {S(sSx)}, {S(sSx)}, 64")]
    G2 = max(g, 26)
    if adv:
        sal, val = q_advance()
        for n, p in enumerate(sal): G.s[min(G2 + n, 33)].append(p)
        for n, p in enumerate(val): G.v[min(G2 + 4, 34) + (n // 2)].append(p)
        G2 += 4
    for n, p in enumerate(tail): G.s[min(G2 + n, 33)].append(p)
    if loop_end:
        G.s[33].append(I(f"s_sub_u32 {S(sCnt)}, {S(sCnt)}, 1"))
        G.s[34].append(I(f"s_cmp_lg_u32 {S(sCnt)}, 0"))
    if barrier:
        G.s[34].append(W(lg=0, vm=vm_end))
        G.s[35].append(I("s_barrier"))
    else:
        G.s[35].append(W(lg=0))
    if extra is not None:
        for k in range(36):
            cap = 2 - sum(2 if i.kind == "dma" else 1 for i in G.v[k])
            while cap > 0 and extra:
                G.v[k].append(extra.pop(0)); cap -= 1
    out = G.flat()
    if loop_end: out.append(I(f"s_cbranch_scc1 {loop_end}"))
    return out

def att_plan(P):
    ones = list(P["ones"])
    bb = []
    cstart = {}
    o4 = ones[:(len(ones) + 1) // 2]; o6 = ones[(len(ones) + 1) // 2:]
    for c in range(8):
        cstart[c] = len(bb)
        if c % 2 == 0:
            kt = c // 2
            for q in list(range(4)) + ([4] if kt < 2 else []):
                for s in range(4): bb.append(("qk", kt, q, s))
            if c == 4: bb += [("one", q, u) for q, u in o4]
            if c == 6: bb += [("one", q, u) for q, u in o6]
        else:
            for dt in (c - 1, c):
                for q in range(4):
                    for u in range(2): bb.append(("pv", dt, q, u))
                bb.append(("pv", dt, 4, 0))
    N = len(bb); cstart[8] = N
    cls = [None] * N
    ds = {}; dm = {}
    for c in range(8):
        a, b = cstart[c], cstart[c + 1]
        if c % 2 == 0:
            k = 0
            for d2 in range(2):
                for u in range(2):
                    for jh in range(2):
                        g = a + 2 * k; cls[g] = "D"; ds[g] = ("v", c + d2, d2, u, jh); k += 1
        else:
            off = 2 if c == 7 else 0
            for s in range(4):
                g = a + off + 2 * s; cls[g] = "D"; ds[g] = ("k", ((c + 1) // 2) % 4, s)
            for j in range(2):
                g = a + off + 8 + 2 * j + (2 if c != 7 else 0); cls[g] = "M"; dm[g] = (c, j)
    free = [g for g in range(N) if cls[g] is None]
    nP = len(free) - 72
    Es = []
    prevE = False
    cand = []
    for g in range(N):
        if cls[g] is None:
            if prevE: cand.append(g); prevE = False
            else: prevE = True
        else: prevE = False
    if len(cand) > nP:
        drop = len(cand) - nP
        keep = [x for n, x in enumerate(cand) if not ((n + 1) * drop // len(cand) != n * drop // len(cand))]
        cand = keep
    while len(cand) < nP:
        rest = [g for g in free if g not in cand]
        need = nP - len(cand)
        add = [rest[(2 * k + 1) * len(rest) // (2 * need)] for k in range(need)]
        cand += add
    for g in free: cls[g] = "P" if g in cand else "E"
    assert cls.count("E") == 72, cls.count("E")
    Eg = [g for g in range(N) if cls[g] == "E"]
    exps = [(kt, q, r) for kt in range(4) for q in (list(range(4)) + ([4] if kt < 2 else [])) for r in range(4)]
    pos = {e[:]: g for g, e in enumerate(bb)}
    def egap(n): return Eg[n % 72] + N * (n // 72)
    def try_rho(rho):
        et = {e: egap(j + rho) for j, e in enumerate(exps)}
        for (kt, q, r), t in et.items():
            if t < pos[("qk", kt, q, 3)] + 3: return None
        cap = {"E": 0, "M": 0, "D": 1, "P": 2}
        fixed = P.get("fixedplain", {})
        queue = []; place = {}
        ev = {}
        for it in range(6):
            for e, t in et.items(): ev.setdefault(t + it * N, []).append((it, e))
        for t in range(0, 7 * N):
            c = cap[cls[t % N]] - fixed.get(t % N, 0)
            while c > 0 and queue:
                place[queue.pop(0)] = t; c -= 1
            for it, (kt, q, r) in ev.get(t, []):
                if r % 2 == 1: queue.append((it, "cvt", kt, q, r // 2))
                if (q, kt // 2) not in ones: queue.append((it, "add", kt, q, r))
        p3 = {k[1:]: v - 3 * N for k, v in place.items() if k[0] == 3}
        p4 = {k[1:]: v - 4 * N for k, v in place.items() if k[0] == 4}
        if p3 != p4: return None
        for (ty, kt, q, x), t in p3.items():
            kt2 = (kt + 2) % 4
            if ("qk", kt2, q, 0) in pos: nxt = pos[("qk", kt2, q, 0)] + (N if kt2 < kt else 0)
            else: nxt = pos[("qk", kt, q, 0)] + N
            if t >= nxt: return None
            if ty == "cvt":
                use = pos[("pv", 0, q, kt // 2)] + N
                if t > use - 2: return None
        return et, p3
    ok = [r for r in range(0, 40) if try_rho(r)]
    assert ok, "no feasible rho"
    rho = P["rho"] if P["rho"] is not None else ok[len(ok) // 2]
    print("N", N, "feasible rho", ok, "chosen", rho, "".join(cls))
    et, pl = try_rho(rho)
    return dict(bb=bb, N=N, cstart=cstart, cls=cls, ds=ds, dm=dm, et=et, pl=pl, ones=ones, pos=pos)

def lacc(ones, q):
    qs = sorted(set(x for x, _ in ones))
    return aL + 4 * qs.index(q)

def att_iter(pl, p, mode, exit_label=None, loop_label=None):
    bb, N, ones, cst = pl["bb"], pl["N"], pl["ones"], pl["cstart"]
    mf = []
    for e in bb:
        if e[0] == "qk":
            _, kt, q, s = e
            d = V(Sreg(kt, q), 4); c = V(NEGM + 4 * q, 4) if s == 0 else d
            mf.append(I(f"{M16} {d}, {A(aKf+4*s,4)}, {Qf(q,s)}, {c}") if mode != "epi" else None)
        elif e[0] == "pv":
            _, dt, q, u = e
            o = A(Oreg(q, dt), 4)
            mf.append(I(f"{M16} {o}, {A(aVf+8*(dt%2)+4*u,4)}, {V(Preg(p,q,u),4)}, {o}") if mode != "pro" else None)
        else:
            _, q, u = e
            o = A(lacc(ones, q), 4)
            mf.append(I(f"{M16} {o}, {V(ONESV,4)}, {V(Preg(p,q,u),4)}, {o}") if mode != "pro" else None)
    G = Gaps(mf)
    for g, d in pl["ds"].items():
        if d[0] == "v":
            if mode == "pro": continue
            _, dt, d2, u, jh = d
            G.v[g].append(I(f"ds_read_b64_tr_b16 {A(aVf+8*d2+4*u+2*jh,2)}, {V(vVa[u])} offset:{p*PAIR + SLOT + jh*256 + dt*32}", tag=f"v{d2}"))
        else:
            if mode == "epi": continue
            _, kt, s = d
            pp = (1 - p) if kt == 0 else p
            G.v[g].append(I(f"ds_read_b128 {A(aKf+4*s,4)}, {V(vKa[(kt//2)*2 + s//2])} offset:{pp*PAIR + (kt&1)*256 + (s&1)*64}", tag="k"))
    def softmax_ops(buf, lo, hi, shift):
        for (kt, q, r), t in pl["et"].items():
            if lo <= t < hi:
                x = V(Sreg(kt, q) + r); G.v[t - shift].append(I(f"v_exp_f32 {x}, {x}"))
        for (ty, kt, q, x), t in sorted(pl["pl"].items(), key=lambda kv: kv[1]):
            if lo <= t < hi:
                sb = Sreg(kt, q)
                if ty == "cvt":
                    G.v[t - shift].append(I(f"v_cvt_pk_bf16_f32 {V(Preg(buf,q,kt//2) + (kt%2)*2 + x)}, {V(sb+2*x)}, {V(sb+2*x+1)}"))
                else:
                    G.v[t - shift].append(I(f"v_add_f32 {V(VL+q)}, {V(VL+q)}, {V(sb+x)}"))
    if mode != "pro": softmax_ops(p, N, 2 * N, N)
    if mode != "epi": softmax_ops(1 - p, 0, N, 0)
    for c in range(8):
        a = cst[c]; b = cst[c + 1]
        if c % 2 == 0:
            G.s[b - 1].append(W(lg=["v0"]))
        else:
            G.s[a + 8].append(W(lg=["v1"]))
            G.s[b - 1].append(W(lg=["k"]))
    x = cst[7]
    if mode != "epi":
        G.s[x].append(W(vm=(12 if mode == "full" else 14)))
        G.s[x + 1].append(I("s_barrier"))
    if mode == "full":
        for g, (c, j) in sorted(pl["dm"].items()):
            if c == 1: base, off, srd, so, jj = sOth, p * PAIR + SLOT, sV, sVo, 2 + j
            elif c in (3, 5):
                base, off = (sOth, PAIR) if p == 0 else (sCur, 0)
                srd, so, jj = sK, sKo, (c - 3) + j
            else:
                base, off = (sOth, PAIR + SLOT) if p == 0 else (sCur, SLOT)
                srd, so, jj = sV, sVo, j
            G.put_s(g - 1, I(f"s_add_u32 m0, {S(base)}, {off + 800*jj}"), lo=g - 1)
            G.v[g].append(kv_dma(srd, S(so), jj))
        G.put_s(cst[2] + 3, I(f"s_add_u32 {S(sVo)}, {S(sVo)}, 16384"))
        G.put_s(cst[6] + 3, I(f"s_add_u32 {S(sKo)}, {S(sKo)}, 16384"))
    def add_plain(lo, hi, lst):
        for o in lst:
            def load(g): return sum(2 if i.kind in ("dma", "trans") else 1 for i in G.v[g])
            g = min(range(lo, hi), key=lambda g: (load(g), g))
            G.v[g].append(o)
    if p == 1 and mode != "epi":
        kl = max(g for g, d in pl["ds"].items() if d[0] == "k" and d[1] == 3)
        kf = min(g for g, d in pl["ds"].items() if d[0] == "k" and d[1] == 0)
        vl = max(g for g, d in pl["ds"].items() if d[0] == "v")
        if mode == "full":
            G.put_s(cst[4] + 3, I(f"s_sub_u32 {S(sD)}, {S(sOth)}, {S(sCur)}"))
            add_plain(kl + 1, kf, [I(f"v_add_u32 {V(r)}, {S(sD)}, {V(r)}") for r in vKa])
            add_plain(vl + 1, N, [I(f"v_add_u32 {V(r)}, {S(sD)}, {V(r)}") for r in vVa])
            lastm = max(pl["dm"])
            G.put_s(lastm + 2, I(f"s_xor_b32 {S(sCur)}, {S(sCur)}, {S(sXr)}"), lo=lastm)
            G.put_s(lastm + 3, I(f"s_xor_b32 {S(sOth)}, {S(sOth)}, {S(sXr)}"), lo=lastm)
        else:
            add_plain(kl + 1, kf, [I(f"v_subrev_u32 {V(r)}, {K0BASE - PAIR}, {V(r)}") for r in vKa])
    if exit_label:
        G.put_s(N - 3, I(f"s_sub_u32 {S(sCnt)}, {S(sCnt)}, 1"), lo=N - 3)
        G.put_s(N - 2, I(f"s_cmp_eq_u32 {S(sCnt)}, 0"), lo=N - 2)
    out = G.flat()
    if exit_label: out.append(I(f"s_cbranch_scc1 {exit_label}"))
    if loop_label: out.append(I(f"s_branch {loop_label}"))
    return out

def L(txt): return [I(x) for x in txt.strip().split("\n") if x.strip()]

def att_state():
    t0, t1, t2, t3 = [V(x) for x in vT[:4]]
    o = L(f"""
v_and_b32 {t0}, 15, v0
v_bfe_u32 {t1}, v0, 4, 2
v_mul_u32_u24 {t2}, 1056, {t0}
v_lshl_add_u32 {t2}, {t1}, 4, {t2}
v_add_u32 {t2}, {K0BASE - PAIR}, {t2}
s_lshl_b32 {S(sT0)}, {S(sTh)}, 9
s_xor_b32 {S(sT1)}, {S(sT0)}, 512
s_lshl_b32 {S(sT2)}, {S(sTh)}, 7
s_xor_b32 {S(sT3)}, {S(sT2)}, 128
v_add_u32 {t3}, {S(sT0)}, {t2}
v_add_u32 {V(vKa[0])}, {S(sT2)}, {t3}
v_add_u32 {V(vKa[1])}, {S(sT3)}, {t3}
v_add_u32 {t3}, {S(sT1)}, {t2}
v_add_u32 {V(vKa[2])}, {S(sT2)}, {t3}
v_add_u32 {V(vKa[3])}, {S(sT3)}, {t3}
v_bfe_u32 {t0}, v0, 2, 4
v_and_b32 {t1}, 3, v0
v_mul_u32_u24 {t2}, 1056, {t0}
v_lshl_add_u32 {t2}, {t1}, 3, {t2}
v_add_u32 {V(vVa[0])}, {S(sT0)}, {t2}
v_add_u32 {V(vVa[1])}, {S(sT1)}, {t2}
s_mov_b32 {S(sCur)}, {S(sKw)}
s_add_u32 {S(sOth)}, {S(sKw)}, {WIN}
s_xor_b32 {S(sXr)}, {S(sCur)}, {S(sOth)}
s_mov_b32 {S(sVo)}, {2*16384}
s_mov_b32 {S(sKo)}, {4*16384}
""")
    return o

def flat_units(units):
    o = []
    for pre, d in units:
        o += pre; o.append(d)
    return o

def xlane_reduce(reg, tmp, op):
    return L(f"""
v_mov_b32 {V(tmp)}, {V(reg)}
v_permlane32_swap_b32 {V(reg)}, {V(tmp)}
{op} {V(reg)}, {V(reg)}, {V(tmp)}
v_mov_b32 {V(tmp)}, {V(reg)}
v_permlane16_swap_b32 {V(reg)}, {V(tmp)}
{op} {V(reg)}, {V(reg)}, {V(tmp)}
""")

def interleave(*lists):
    out = []; lists = [list(l) for l in lists]
    while any(lists):
        for l in lists:
            if l: out.append(l.pop(0))
    return out

def k1(P):
    pl = att_plan(P)
    ones = pl["ones"]
    t0, t1, t2, t3, t4, t5, t6 = [V(x) for x in vT]
    head = L(f"""
s_cmp_ge_u32 s2, 256
s_cbranch_scc1 K1_END
s_load_dwordx16 s[40:55], s[0:1], 0
s_load_dwordx2 s[56:57], s[0:1], 64
s_load_dwordx2 s[60:61], s[0:1], 96
v_lshrrev_b32 {t0}, 6, v0
v_and_b32 v0, 63, v0
v_readfirstlane_b32 {S(sWv)}, {t0}
v_lshlrev_b32 {V(vL16)}, 4, v0
s_and_b32 {S(sTh)}, {S(sWv)}, 1
s_lshr_b32 {S(sHh)}, {S(sWv)}, 1
s_mul_i32 {S(sWo1)}, {S(sWv)}, {4*1088}
s_mul_i32 {S(sWo2)}, {S(sWv)}, 2304
s_add_u32 {S(sWo2)}, {S(sWo2)}, {XOFF}
s_mul_i32 {S(sKw)}, {S(sWv)}, {4*1056}
; wq dma voffsets
v_lshrrev_b32 {t0}, 5, v0
v_lshlrev_b32 {t0}, 17, {t0}
v_and_b32 {t1}, 31, v0
v_lshl_add_u32 {t0}, {t1}, 4, {t0}
s_lshl_b32 {S(sT0)}, {S(sWv)}, 15
v_add_u32 {V(vDw[0])}, {S(sT0)}, {t0}
v_add_u32 {V(vDw[1])}, {8192-1088}, {V(vDw[0])}
v_add_u32 {V(vDw[2])}, {2*(8192-1088)}, {V(vDw[0])}
v_add_u32 {V(vDw[3])}, {3*(8192-1088)}, {V(vDw[0])}
; x dma voffsets
s_mul_i32 {S(sT0)}, {S(sWv)}, 36
v_lshrrev_b32 {t0}, 2, v0
v_add_u32 {t0}, {S(sT0)}, {t0}
v_bfe_u32 {t1}, {t0}, 2, 2
v_sub_u32 {t1}, 0, {t1}
v_xor_b32 {t1}, {t1}, v0
v_and_b32 {t1}, 3, {t1}
v_mul_u32_u24 {t0}, 1152, {t0}
v_lshl_add_u32 {V(vDx[0])}, {t1}, 4, {t0}
v_add_u32 {V(vDx[1])}, {18432-1024}, {V(vDx[0])}
s_add_u32 {S(sT0)}, {S(sT0)}, 32
v_lshrrev_b32 {t0}, 4, v0
v_add_u32 {t0}, {S(sT0)}, {t0}
v_bfe_u32 {t1}, {t0}, 2, 2
v_sub_u32 {t1}, 0, {t1}
v_lshrrev_b32 {t2}, 2, v0
v_xor_b32 {t1}, {t1}, {t2}
v_and_b32 {t1}, 3, {t1}
v_mul_u32_u24 {t0}, 1152, {t0}
v_lshl_add_u32 {t0}, {t1}, 4, {t0}
v_and_b32 {t1}, 3, v0
v_lshl_add_u32 {t0}, {t1}, 2, {t0}
v_subrev_u32 {V(vDx[2])}, 2048, {t0}
s_and_b32 {S(sT0)}, s2, 7
s_lshr_b32 {S(sT1)}, s2, 3
s_lshr_b32 s58, {S(sT0)}, 2
s_and_b32 {S(sT0)}, {S(sT0)}, 3
s_lshl_b32 {S(sT0)}, {S(sT0)}, 2
s_and_b32 {S(sT2)}, {S(sT1)}, 3
s_add_u32 {S(sT0)}, {S(sT0)}, {S(sT2)}
s_lshr_b32 {S(sT1)}, {S(sT1)}, 2
s_waitcnt lgkmcnt(0)
s_cmp_eq_u32 s58, 0
s_cselect_b32 {S(sX)}, s40, s50
s_cselect_b32 {S(sX+1)}, s41, s51
s_cselect_b32 {S(sW)}, s46, s56
s_cselect_b32 {S(sW+1)}, s47, s57
s_cselect_b32 {S(sK)}, s42, s52
s_cselect_b32 {S(sK+1)}, s43, s53
s_cselect_b32 {S(sV)}, s44, s54
s_cselect_b32 {S(sV+1)}, s45, s55
s_mul_i32 {S(sT2)}, {S(sT1)}, 165888
s_add_u32 {S(sX)}, {S(sX)}, {S(sT2)}
s_addc_u32 {S(sX+1)}, {S(sX+1)}, 0
s_mov_b32 {S(sX+2)}, 165888
s_mov_b32 {S(sX+3)}, 0x00020000
s_lshl_b32 {S(sT2)}, {S(sT0)}, 9
s_add_u32 {S(sW)}, {S(sW)}, {S(sT2)}
s_addc_u32 {S(sW+1)}, {S(sW+1)}, 0
s_sub_u32 {S(sW+2)}, 4718592, {S(sT2)}
s_mov_b32 {S(sW+3)}, 0x00020000
s_mov_b32 {S(sSw)}, 0
s_mov_b32 {S(sSx)}, 0
""")
    for j in range(5):
        head.append(I(f"s_mov_b32 {S(sA)}, {((j+2)%5)*QST}"))
        head += flat_units(q_dmas())
        head += L(f"s_add_u32 {S(sSw)}, {S(sSw)}, 262144\ns_add_u32 {S(sSx)}, {S(sSx)}, 64")
    head += L(f"""
; K/V/O descriptors
s_lshl_b32 {S(sT2)}, {S(sT1)}, 4
s_add_u32 {S(sT2)}, {S(sT2)}, {S(sT0)}
s_lshl_b32 {S(sT2)}, {S(sT2)}, 18
s_add_u32 {S(sK)}, {S(sK)}, {S(sT2)}
s_addc_u32 {S(sK+1)}, {S(sK+1)}, 0
s_mov_b32 {S(sK+2)}, 262144
s_mov_b32 {S(sK+3)}, 0x00020000
s_add_u32 {S(sV)}, {S(sV)}, {S(sT2)}
s_addc_u32 {S(sV+1)}, {S(sV+1)}, 0
s_mov_b32 {S(sV+2)}, 262144
s_mov_b32 {S(sV+3)}, 0x00020000
s_mul_i32 {S(sT2)}, s58, 72
s_mul_i32 {S(sT3)}, {S(sT1)}, 9
s_add_u32 {S(sT2)}, {S(sT2)}, {S(sT3)}
s_lshl_b32 {S(sT2)}, {S(sT2)}, 5
s_lshl_b32 {S(sT3)}, {S(sT0)}, 1
s_add_u32 {S(sT2)}, {S(sT2)}, {S(sT3)}
s_add_u32 {S(sT2)}, {S(sT2)}, {S(sHh)}
s_lshl_b32 {S(sT2)}, {S(sT2)}, 12
s_add_u32 {S(sO)}, s60, {S(sT2)}
s_addc_u32 {S(sO+1)}, s61, 0
s_mov_b32 {S(sO+2)}, {8*131072 + 4096}
s_mov_b32 {S(sO+3)}, 0x00020000
s_mov_b32 {S(sPass)}, 1
s_mov_b32 {S(sScale)}, 0x3e0293ee
; K/V dma voffset
v_lshrrev_b32 {t0}, 4, v0
v_lshlrev_b32 {t0}, 12, {t0}
v_and_b32 {t1}, 15, v0
v_lshl_add_u32 {t0}, {t1}, 4, {t0}
s_lshl_b32 {S(sT0)}, {S(sWv)}, 10
v_add_u32 {V(vDma)}, {S(sT0)}, {t0}
v_bfe_u32 {t0}, v0, 4, 1
v_bfe_u32 {t1}, v0, 2, 2
v_lshl_add_u32 {t0}, {t0}, 3, {t1}
v_mul_u32_u24 {t0}, 1088, {t0}
v_lshrrev_b32 {t1}, 5, v0
v_lshl_add_u32 {t0}, {t1}, 9, {t0}
v_and_b32 {t1}, 3, v0
v_lshl_add_u32 {t0}, {t1}, 4, {t0}
s_lshl_b32 {S(sT0)}, {S(sHh)}, 8
s_lshl_b32 {S(sT1)}, {S(sTh)}, 7
s_add_u32 {S(sT2)}, {S(sT0)}, {S(sT1)}
s_xor_b32 {S(sT3)}, {S(sT2)}, 128
v_add_u32 {V(vWl[0])}, {S(sT2)}, {t0}
v_add_u32 {V(vWl[1])}, {S(sT3)}, {t0}
v_and_b32 {t0}, 15, v0
v_bfe_u32 {t1}, v0, 2, 2
v_sub_u32 {t1}, 0, {t1}
v_lshrrev_b32 {t2}, 4, v0
v_xor_b32 {t1}, {t1}, {t2}
v_and_b32 {t1}, 3, {t1}
v_lshlrev_b32 {t0}, 6, {t0}
v_lshl_add_u32 {V(vXl[1])}, {t1}, 4, {t0}
s_lshl_b32 {S(sT0)}, {S(sTh)}, 12
v_add_u32 {V(vXl[0])}, {S(sT0)}, {V(vXl[1])}
""")
    head += att_state()
    for k in range(4): head.append(I(f"v_mov_b32 {V(ONESV+k)}, 0x3f803f80"))
    for k in range(5): head.append(I(f"v_mov_b32 {V(VL+k)}, 0"))
    for k in range(144): head.append(I(f"v_mov_b32 {V(ACC+k)}, 0"))
    for k in range(160): head.append(I(f"v_accvgpr_write_b32 {A(aO+k)}, 0"))
    head += L(f"s_mov_b32 {S(sB)}, {2*QST}")
    head += q_advance()[1]
    head += [W(vm=28), I("s_barrier")]
    head += q_reads(0)
    sal, val = q_advance()
    head += sal + val
    head += [I(f"s_mov_b32 {S(sCnt)}, 6"), W(lg=0, vm=21), I("s_barrier")]
    qloop = [I("K1_QLOOP:")] + q_stage(0, False, True, q_dmas(), 21) + q_stage(1, False, True, q_dmas(), 21, loop_end="K1_QLOOP")
    tail = []
    tail += q_stage(0, False, True, q_dmas() + kv_unit("K", 0, 8), 21 + 4)
    tail += q_stage(1, False, True, kv_unit("K", 1, 0), 14 + 8, qdma=False)
    tail += q_stage(0, False, True, kv_unit("V", 0, 1) + kv_unit("K", 2, 2), 7 + 16, qdma=False)
    tail += q_stage(1, False, True, kv_unit("V", 1, 3), 20, qdma=False)
    tail += q_stage(0, False, True, kv_unit("K", 3, 4) + kv_unit("V", 2, 5, (0, 1)), None, qdma=False, adv=False, barrier=False)
    order = [(t, 4) for t in range(4)] + [(t, q) for q in range(4) for t in range(8)]
    mf = [I(f"{M16} {V(Acc(t,q),4)}, {A(AF(1,t),4)}, {BF(1,q)}, {V(Acc(t,q),4)}") for t, q in order]
    G = Gaps(mf)
    conv = []
    for n, (t, q) in enumerate(order):
        a = Acc(t, q)
        s, h = t // 2, t % 2
        dst = (QF + 16 * q + 4 * s + 2 * h) if q < 4 else (Acc(0, 4) + 2 * t)
        ops = [I(f"v_mul_f32 {V(a+r)}, {S(sScale)}, {V(a+r)}") for r in range(4)]
        ops += [I(f"v_cvt_pk_bf16_f32 {V(dst+x)}, {V(a+2*x)}, {V(a+2*x+1)}") for x in range(2)]
        if q == 4 and t % 2 == 1:
            ops.append(I(f"ds_write_b128 {V(vT[4])}, {V(Acc(0,4) + 4*(t//2), 4)} offset:{EXB % 65536 + 1024*(t//2)}", tag="xw"))
        conv += [(n + 3, o) for o in ops]
    pre17 = L(f"""
s_lshl_b32 {S(sT0)}, {S(sWv)}, 11
s_add_u32 {S(sT0)}, {S(sT0)}, {EXB - EXB % 65536}
s_xor_b32 {S(sT1)}, {S(sT0)}, 2048
v_add_u32 {V(vT[4])}, {S(sT0)}, {V(vL16)}
v_add_u32 {V(vT[5])}, {S(sT1)}, {V(vL16)}
v_bfe_u32 {V(vT[0])}, v0, 4, 2
v_lshlrev_b32 {V(vT[0])}, 4, {V(vT[0])}
s_lshl_b32 {S(sT2)}, {S(sTh)}, 7
s_add_u32 {S(sT2)}, {S(sT2)}, {K0BASE}
s_xor_b32 {S(sT3)}, {S(sT2)}, 128
v_add_u32 {V(vT[1])}, {S(sT3)}, {V(vT[0])}
v_add_u32 {V(vT[0])}, {S(sT2)}, {V(vT[0])}
""")
    assert K0BASE % 256 == 0
    head[-3:-3] = pre17
    for g in range(36):
        c = 2
        while c > 0 and conv and conv[0][0] <= g:
            G.v[g].append(conv.pop(0)[1]); c -= 1
    st17 = []
    for m, s, v in zip(G.m, G.s, G.v): st17 += [m] + s + v
    rest = [o for _, o in conv]
    mid = rest[:8] + [W(lg=0, vm=22), I("s_barrier")]
    rest = rest[8:]
    rds = []
    for s in range(4):
        rds.append(I(f"ds_read_b128 {V(TMP16+16+4*s,4)}, {V(vT[s//2])} offset:{(s&1)*64}"))
    for s in range(4):
        rds.append(I(f"ds_read_b128 {A(aQs+4*s,4)}, {V(vT[4 + s//2])} offset:{EXB % 65536 + 1024*(s&1)}"))
    mid += rds + rest
    for k in range(4 * len(set(q for q, _ in ones))): mid.append(I(f"v_accvgpr_write_b32 {A(aL+k)}, 0"))
    for k in range(16): mid.append(I(f"v_xor_b32 {V(TMP16+16+k)}, 0x80008000, {V(TMP16+16+k)}"))
    for q in range(5):
        for s in range(4):
            d = V(NEGM + 4 * q, 4)
            mid.append(I(f"{M16} {d}, {V(TMP16+16+4*s,4)}, {Qf(q,s)}, {'0' if s == 0 else d}"))
    att0 = [I("K1_ATT:"), I(f"s_mov_b32 {S(sCnt)}, 8")]
    for s in range(4):
        att0.append(I(f"ds_read_b128 {A(aKf+4*s,4)}, {V(vKa[s//2])} offset:{PAIR + (s&1)*64}", tag="k"))
    pro = att_iter(pl, 1, "pro")
    itA = [I("K1_ALOOP:")] + att_iter(pl, 0, "full", exit_label="K1_EPI")
    itB = att_iter(pl, 1, "full", loop_label="K1_ALOOP")
    epi = [I("K1_EPI:")] + att_iter(pl, 1, "epi")
    fin = []
    oq = sorted(set(q for q, _ in ones))
    for q in range(5):
        units = [(q, u) for u in (range(2) if q < 4 else [0])]
        anyadd = any(x not in ones for x in units)
        if anyadd: fin += xlane_reduce(VL + q, vT[0], "v_add_f32")
        if q in oq:
            if anyadd:
                fin += L(f"v_accvgpr_read_b32 {V(vT[0])}, {A(lacc(ones,q))}\nv_add_f32 {V(VL+q)}, {V(VL+q)}, {V(vT[0])}")
            else:
                fin += L(f"v_accvgpr_read_b32 {V(VL+q)}, {A(lacc(ones,q))}")
    MB = K0BASE
    fin += L(f"""
v_add_f32 {t0}, {V(VL)}, {V(VL+1)}
v_add_f32 {t1}, {V(VL+2)}, {V(VL+3)}
v_add_f32 {t0}, {t0}, {V(VL+4)}
v_add_f32 {t0}, {t0}, {t1}
v_mov_b32 {t1}, 0x4e800000
v_cmp_nlt_f32 vcc, {t0}, {t1}
s_lshl_b32 {S(sT0)}, {S(sWv)}, 12
s_xor_b32 {S(sT1)}, {S(sT0)}, 4096
s_add_u32 {S(sT0)}, {S(sT0)}, {MB}
s_add_u32 {S(sT1)}, {S(sT1)}, {MB}
v_add_u32 {t2}, {S(sT0)}, {V(vL16)}
v_add_u32 {t3}, {S(sT1)}, {V(vL16)}
s_cmp_lg_u64 vcc, 0
s_cselect_b32 {S(sT2)}, {S(sPass)}, 0
v_mov_b32 {t0}, {S(sT2)}
s_lshl_b32 {S(sT0)}, {S(sWv)}, 8
s_add_u32 {S(sT0)}, {S(sT0)}, {EXB}
s_xor_b32 {S(sT1)}, {S(sT0)}, 256
v_lshlrev_b32 {t1}, 2, v0
v_add_u32 {t4}, {S(sT0)}, {t1}
v_add_u32 {t5}, {S(sT1)}, {t1}
s_lshl_b32 {S(sT0)}, {S(sWv)}, 2
s_add_u32 {S(sT0)}, {S(sT0)}, {FLAGB}
v_mov_b32 {t6}, {S(sT0)}
ds_write_b32 {t4}, {V(VL+4)}
ds_write_b32 {t6}, {t0}
s_cmp_eq_u32 {S(sTh)}, 0
s_cbranch_scc1 K1_M0
""")
    assert MB % 8192 == 4096 or MB % 8192 == 0
    KEEP = SB
    def mergepart(send, keep):
        o = [I(f"ds_write_b128 {t2}, {A(Oreg(4, send + k), 4)} offset:{1024*k}") for k in range(4)]
        o += [I(f"v_accvgpr_read_b32 {V(KEEP+k)}, {A(Oreg(4, keep) + k)}") for k in range(16)]
        return o
    fin1 = mergepart(0, 4) + [I("s_branch K1_M1")]
    fin0 = [I("K1_M0:")] + mergepart(4, 0)
    fin2 = [I("K1_M1:")]
    for q in range(4): fin2.append(I(f"v_rcp_f32 {V(VL+q)}, {V(VL+q)}"))
    fin2 += [W(lg=0), I("s_barrier")]
    GOT = SB + 16
    fin2 += L(f"v_mov_b32 {t6}, {FLAGB}")
    fin2 += [I(f"ds_read_b128 {V(TMP16,4)}, {t6}"), I(f"ds_read_b32 {t0}, {t5}")]
    fin2 += [I(f"ds_read_b128 {V(GOT+4*k,4)}, {t3} offset:{1024*k}") for k in range(4)]
    fin2 += L(f"s_lshl_b32 {S(sT0)}, {S(sTh)}, 19")
    n = 0
    for q in range(4):
        for u in range(4):
            tb = PB + 8 * (n % 4); pbk = PB + 32 + 4 * (n % 4); n += 1
            fin2 += [I(f"v_accvgpr_read_b32 {V(tb+k)}, {A(Oreg(q, 2*u) + k)}") for k in range(8)]
            fin2 += [I(f"v_mul_f32 {V(tb+k)}, {V(tb+k)}, {V(VL+q)}") for k in range(8)]
            fin2 += [I(f"v_cvt_pk_bf16_f32 {V(pbk+k)}, {V(tb+2*k)}, {V(tb+2*k+1)}") for k in range(4)]
            fin2.append(I(f"buffer_store_dwordx4 {V(pbk,4)}, {V(vL16)}, {S(sO,4)}, {S(sT0)} offen offset:{1024*u}"))
        fin2.append(I(f"s_add_u32 {S(sT0)}, {S(sT0)}, 131072"))
    fin2 += L(f"""
v_add_f32 {V(VL+4)}, {V(VL+4)}, {t0}
v_rcp_f32 {V(VL+4)}, {V(VL+4)}
s_lshl_b32 {S(sT0)}, {S(sTh)}, 11
s_add_u32 {S(sT0)}, {S(sT0)}, {8*131072}
v_or_b32 {V(TMP16)}, {V(TMP16)}, {V(TMP16+1)}
v_or3_b32 {V(TMP16)}, {V(TMP16)}, {V(TMP16+2)}, {V(TMP16+3)}
""")
    fin2 += [I(f"v_add_f32 {V(KEEP+k)}, {V(KEEP+k)}, {V(GOT+k)}") for k in range(16)]
    fin2 += [I(f"v_readfirstlane_b32 {S(sT1)}, {V(TMP16)}")]
    fin2 += [I(f"v_mul_f32 {V(KEEP+k)}, {V(KEEP+k)}, {V(VL+4)}") for k in range(16)]
    fin2 += [I(f"v_cvt_pk_bf16_f32 {V(GOT+k)}, {V(KEEP+2*k)}, {V(KEEP+2*k+1)}") for k in range(8)]
    fin2 += [I(f"buffer_store_dwordx4 {V(GOT+4*k,4)}, {V(vL16)}, {S(sO,4)}, {S(sT0)} offen offset:{1024*k}") for k in range(2)]
    fin2 += L(f"""
s_cmp_lg_u32 {S(sT1)}, 0
s_cbranch_scc1 K1_FALLBACK
K1_END:
s_endpgm
""")
    fb = L(f"""
K1_FALLBACK:
s_waitcnt vmcnt(0) lgkmcnt(0)
s_barrier
s_mov_b32 {S(sPass)}, 0
v_and_b32 {t0}, 15, v0
v_lshrrev_b32 {t1}, 4, v0
v_lshlrev_b32 {t0}, 8, {t0}
v_lshl_add_u32 {t0}, {t1}, 4, {t0}
s_lshl_b32 {S(sT0)}, {S(sTh)}, 7
s_xor_b32 {S(sT1)}, {S(sT0)}, 128
v_add_u32 {t1}, {S(sT1)}, {t0}
v_add_u32 {t0}, {S(sT0)}, {t0}
s_mov_b32 {S(sT2)}, 0
""")
    fb += [I(f"v_mov_b32 {V(NEGM+k)}, 0xff800000") for k in range(20)]
    fbl = [I("K1_FBLOOP:")]
    for s in range(4):
        fbl.append(I(f"buffer_load_dwordx4 {V(TMP16+4*s,4)}, {V(vT[s//2])}, {S(sK,4)}, {S(sT2)} offen offset:{(s&1)*64}"))
    fbl.append(I("s_waitcnt vmcnt(0)"))
    for q in range(5):
        for s in range(4):
            d = V(SB + 4 * q, 4)
            fbl.append(I(f"{M16} {d}, {V(TMP16+4*s,4)}, {Qf(q,s)}, {'0' if s == 0 else d}"))
    fbl.append(I("s_nop 7"))
    fbl += [I(f"v_max_f32 {V(NEGM+k)}, {V(NEGM+k)}, {V(SB+k)}") for k in range(20)]
    fbl += L(f"s_add_u32 {S(sT2)}, {S(sT2)}, 4096\ns_cmp_lt_u32 {S(sT2)}, 262144\ns_cbranch_scc1 K1_FBLOOP")
    fb2 = []
    for q in range(5):
        b = NEGM + 4 * q
        fb2 += L(f"v_max_f32 {V(b)}, {V(b)}, {V(b+1)}\nv_max3_f32 {V(b)}, {V(b)}, {V(b+2)}, {V(b+3)}")
        fb2 += xlane_reduce(b, vT[0], "v_max_f32")
        fb2 += [I(f"v_xor_b32 {V(b+k)}, 0x80000000, {V(b)}") for k in (3, 2, 1, 0)]
    fb2 += att_state()
    fb2 += flat_units(kv_unit("K", 0, 8) + kv_unit("K", 1, 0) + kv_unit("V", 0, 1) + kv_unit("K", 2, 2) + kv_unit("V", 1, 3) + kv_unit("K", 3, 4) + kv_unit("V", 2, 5, (0, 1)))
    for k in range(5): fb2.append(I(f"v_mov_b32 {V(VL+k)}, 0"))
    for k in range(160): fb2.append(I(f"v_accvgpr_write_b32 {A(aO+k)}, 0"))
    for k in range(20): fb2.append(I(f"v_accvgpr_write_b32 {A(aL+k)}, 0"))
    fb2 += L("s_waitcnt vmcnt(0) lgkmcnt(0)\ns_barrier\ns_nop 7\ns_branch K1_ATT")

    main = head + qloop + qloop + tail + st17 + mid + att0 + pro + itA + itB + itA + itB + itA + epi + fin
    resolve(main + fin1 + fin2 + fb + fbl + fbl + fb2 + att0 + pro)
    resolve(main + fin0 + fin2)
    for nm, s in (("head", head), ("qloop", qloop), ("tail", tail), ("st17", st17), ("mid", mid), ("pro", pro), ("itA", itA), ("itB", itB), ("epi", epi), ("fin", fin + fin1 + fin0 + fin2)):
        report(s, nm)
    code = head + qloop + tail + st17 + mid + att0 + pro + itA + itB + epi + fin + fin1 + fin0 + fin2 + fb + fbl + fb2
    return render(code)

def k2(P):
    D = P["k2d"]
    ST = 4224
    sOf, sWo, sOut = 4, 8, 12
    sWv, sT0, sT1, sT2, sT3, sSo, sSw, sM, sCnt, sBr, sTg, sNg = 24, 25, 26, 27, 28, 29, 30, 31, 32, 33, 34, 35
    vO = [1, 2, 3, 4, 5, 6]; vWd = [7, 8, 9, 10]; vRd = [11, 12, 13, 14]; vL16 = 15; t0, t1, t2 = "v16", "v17", "v18"
    ACC2 = 24
    def acc(nt, tt): return ACC2 + 4 * (6 * nt + tt)
    def Bf(d, tt): return A(24 * d + 4 * tt, 4)
    def Af(par, nt): return 120 + 16 * par + 4 * nt
    head = L(f"""
s_cmp_ge_u32 s2, 216
s_cbranch_scc1 K2_END
s_load_dwordx2 s[40:41], s[0:1], 32
s_load_dwordx4 s[44:47], s[0:1], 72
s_load_dwordx2 s[48:49], s[0:1], 96
v_lshrrev_b32 {t0}, 6, v0
v_and_b32 v0, 63, v0
v_readfirstlane_b32 {S(sWv)}, {t0}
v_lshlrev_b32 {V(vL16)}, 4, v0
s_and_b32 {S(sT0)}, s2, 7
s_lshr_b32 {S(sT1)}, s2, 3
s_lshr_b32 {S(sBr)}, {S(sT0)}, 2
s_and_b32 {S(sT0)}, {S(sT0)}, 3
s_mul_i32 {S(sTg)}, {S(sT0)}, 3
s_mul_i32 {S(sT2)}, {S(sT1)}, 57
s_lshr_b32 {S(sT2)}, {S(sT2)}, 9
s_add_u32 {S(sTg)}, {S(sTg)}, {S(sT2)}
s_mul_i32 {S(sT2)}, {S(sT2)}, 9
s_sub_u32 {S(sNg)}, {S(sT1)}, {S(sT2)}
v_mov_b32 {V(vO[0])}, {V(vL16)}
v_add_u32 {V(vO[1])}, {131072}, {V(vL16)}
v_add_u32 {V(vO[2])}, {2*131072}, {V(vL16)}
v_add_u32 {V(vO[3])}, {3*131072}, {V(vL16)}
v_add_u32 {V(vO[4])}, {4*131072}, {V(vL16)}
v_add_u32 {V(vO[5])}, {5*131072}, {V(vL16)}
v_lshrrev_b32 {t0}, 3, v0
v_mul_u32_u24 {t0}, {4*1152}, {t0}
v_and_b32 {t1}, 7, v0
v_lshl_add_u32 {V(vWd[0])}, {t1}, 4, {t0}
v_add_u32 {V(vWd[1])}, 96, {V(vWd[0])}
v_add_u32 {V(vWd[2])}, 192, {V(vWd[0])}
v_add_u32 {V(vWd[3])}, 288, {V(vWd[0])}
s_mul_i32 {S(sM)}, {S(sWv)}, {D*ST}
s_waitcnt lgkmcnt(0)
s_mul_i32 {S(sT0)}, {S(sBr)}, 72
s_mul_i32 {S(sT1)}, {S(sTg)}, 6
s_add_u32 {S(sT0)}, {S(sT0)}, {S(sT1)}
s_lshl_b32 {S(sT0)}, {S(sT0)}, 17
s_lshl_b32 {S(sT1)}, {S(sWv)}, 15
s_add_u32 {S(sT0)}, {S(sT0)}, {S(sT1)}
s_add_u32 {S(sOf)}, s48, {S(sT0)}
s_addc_u32 {S(sOf+1)}, s49, 0
s_mov_b32 {S(sOf+2)}, {5*131072 + 32768}
s_mov_b32 {S(sOf+3)}, 0x00020000
s_cmp_eq_u32 {S(sBr)}, 0
s_cselect_b32 {S(sWo)}, s40, s44
s_cselect_b32 {S(sWo+1)}, s41, s45
s_mul_i32 {S(sT0)}, {S(sWv)}, {1024*1152}
s_lshl_b32 {S(sT1)}, {S(sNg)}, 7
s_add_u32 {S(sT0)}, {S(sT0)}, {S(sT1)}
s_add_u32 {S(sWo)}, {S(sWo)}, {S(sT0)}
s_addc_u32 {S(sWo+1)}, {S(sWo+1)}, 0
s_sub_u32 {S(sWo+2)}, {1024*1152}, {S(sT1)}
s_mov_b32 {S(sWo+3)}, 0x00020000
s_mov_b32 {S(sSo)}, 0
s_mov_b32 {S(sSw)}, 0
""")
    def wdma(d):
        return [I(f"buffer_load_dwordx4 {V(vWd[p])}, {S(sWo,4)}, {S(sSw)} offen offset:{1056*p} lds") for p in range(4)]
    def oload(d, tt):
        return I(f"buffer_load_dwordx4 {Bf(d,tt)}, {V(vO[tt])}, {S(sOf,4)}, {S(sSo)} offen offset:{1024*(d%4)}")
    for d in range(D):
        head.append(I(f"s_add_u32 m0, {S(sM)}, {d*ST}"))
        head += wdma(d)
        head.append(I(f"s_add_u32 {S(sSw)}, {S(sSw)}, 36864"))
        head += [oload(d, tt) for tt in range(6)]
        if d % 4 == 3: head.append(I(f"s_add_u32 {S(sSo)}, {S(sSo)}, 4096"))
    head += L(f"""
v_bfe_u32 {t0}, v0, 2, 2
v_mul_u32_u24 {t0}, 1056, {t0}
v_lshrrev_b32 {t1}, 4, v0
v_lshl_add_u32 {t0}, {t1}, 7, {t0}
v_and_b32 {t1}, 3, v0
v_lshl_add_u32 {t0}, {t1}, 3, {t0}
v_add_u32 {t0}, {S(sM)}, {t0}
""")
    for nt in range(4):
        head += L(f"s_xor_b32 {S(sT0)}, {S(sWv)}, {nt}\ns_lshl_b32 {S(sT0)}, {S(sT0)}, 5\nv_add_u32 {V(vRd[nt])}, {S(sT0)}, {t0}")
    head += L(f"""
s_mul_i32 {S(sT0)}, {S(sTg)}, {96*2304}
s_mul_i32 {S(sT1)}, {S(sBr)}, 1152
s_add_u32 {S(sT0)}, {S(sT0)}, {S(sT1)}
s_lshl_b32 {S(sT1)}, {S(sNg)}, 7
s_add_u32 {S(sT0)}, {S(sT0)}, {S(sT1)}
s_lshl_b32 {S(sT1)}, {S(sWv)}, 5
s_add_u32 {S(sT0)}, {S(sT0)}, {S(sT1)}
s_add_u32 {S(sOut)}, s46, {S(sT0)}
s_addc_u32 {S(sOut+1)}, s47, 0
s_sub_u32 {S(sOut+2)}, {1152*2304}, {S(sT0)}
s_mov_b32 {S(sOut+3)}, 0x00020000
s_mov_b32 {S(sCnt)}, {32//D}
""")
    for k in range(96): head.append(I(f"v_mov_b32 {V(ACC2+k)}, 0"))
    def areads(d, par):
        return [I(f"ds_read_b64_tr_b16 {V(Af(par,nt)+2*h,2)}, {V(vRd[nt])} offset:{d*ST + 512*h}", tag="a") for nt in range(4) for h in range(2)]
    head += [W(vm=10 * D - 4)] + areads(0, 0)
    loop = [I("K2_LOOP:")]
    for d in range(D):
        par = d % 2
        mf = [I(f"{M16} {V(acc(nt,tt),4)}, {V(Af(par,nt),4)}, {Bf(d,tt)}, {V(acc(nt,tt),4)}") for tt in range(6) for nt in range(4)]
        G = Gaps(mf)
        pre = [W(lg=0, vm=6 + 10 * (D - 2)), I(f"s_add_u32 m0, {S(sM)}, {d*ST}")]
        if d == 0:
            pre += L(f"s_sub_u32 {S(sCnt)}, {S(sCnt)}, 1\ns_cmp_eq_u32 {S(sCnt)}, 0\ns_cselect_b32 {S(sSo)}, 0x40000000, {S(sSo)}")
        w = wdma(d); ar = areads((d + 1) % D, 1 - par)
        for p in range(4): G.v[p].append(w[p])
        G.s[4].append(I(f"s_add_u32 {S(sSw)}, {S(sSw)}, 36864"))
        k = 0
        for g in (4, 5, 6, 8, 9, 10, 12, 13): G.v[g].append(ar[k]); k += 1
        for tt in range(6): G.v[4 * tt + 3].append(oload(d, tt))
        loop += pre + G.flat()
        if d % 4 == 3: loop.append(I(f"s_add_u32 {S(sSo)}, {S(sSo)}, 4096"))
    loop += L(f"s_cmp_lg_u32 {S(sCnt)}, 0\ns_cbranch_scc1 K2_LOOP")
    fin = L(f"""
s_waitcnt vmcnt(0) lgkmcnt(0)
s_barrier
""")
    for nt in range(1, 4):
        fin += L(f"s_xor_b32 {S(sT0)}, {S(sWv)}, {nt}\ns_mul_i32 {S(sT0)}, {S(sT0)}, {18*1024}\nv_add_u32 {V(vRd[nt])}, {S(sT0)}, {V(vL16)}")
    fin += L(f"s_mul_i32 {S(sT0)}, {S(sWv)}, {18*1024}\nv_add_u32 {V(vRd[0])}, {S(sT0)}, {V(vL16)}")
    for nt in range(1, 4):
        for tt in range(6):
            fin.append(I(f"ds_write_b128 {V(vRd[nt])}, {V(acc(nt,tt),4)} offset:{((nt-1)*6+tt)*1024}"))
    fin += L(f"""
v_and_b32 {t0}, 15, v0
v_mul_u32_u24 {t0}, 2304, {t0}
v_lshrrev_b32 {t1}, 4, v0
v_lshl_add_u32 {t0}, {t1}, 3, {t0}
s_mov_b32 {S(sT0)}, 0
s_waitcnt lgkmcnt(0)
s_barrier
""")
    for tt in range(6):
        for j in range(3):
            fin.append(I(f"ds_read_b128 {V(acc(1+j,tt),4)}, {V(vRd[0])} offset:{(j*6+tt)*1024}"))
    for tt in range(6):
        a = acc(0, tt)
        for r in range(4): fin.append(I(f"v_add_f32 {V(a+r)}, {V(a+r)}, {V(acc(1,tt)+r)}"))
        for r in range(4): fin.append(I(f"v_add_f32 {V(acc(2,tt)+r)}, {V(acc(2,tt)+r)}, {V(acc(3,tt)+r)}"))
        for r in range(4): fin.append(I(f"v_add_f32 {V(a+r)}, {V(a+r)}, {V(acc(2,tt)+r)}"))
        fin += [I(f"v_cvt_pk_bf16_f32 {V(a+x)}, {V(a+2*x)}, {V(a+2*x+1)}") for x in range(2)]
        fin.append(I(f"buffer_store_dwordx2 {V(a,2)}, {t0}, {S(sOut,4)}, {S(sT0)} offen"))
        fin.append(I(f"s_add_u32 {S(sT0)}, {S(sT0)}, {16*2304}"))
    fin += L("K2_END:\ns_endpgm")
    resolve(head + loop + loop + loop + fin)
    for nm, s in (("k2head", head), ("k2loop", loop), ("k2fin", fin)): report(s, nm)
    lds = max(4 * D * ST, 72 * 1024)
    return render(head + loop + fin), lds

def kd(name, nv, na):
    return f""".p2align 6
.amdhsa_kernel {name}
  .amdhsa_next_free_vgpr {nv+na}
  .amdhsa_next_free_sgpr 102
  .amdhsa_accum_offset {nv}
  .amdhsa_group_segment_fixed_size 0
  .amdhsa_kernarg_size 104
  .amdhsa_user_sgpr_count 2
  .amdhsa_user_sgpr_kernarg_segment_ptr 1
  .amdhsa_system_sgpr_workgroup_id_x 1
.end_amdhsa_kernel
"""

def build(P, path):
    c1 = k1(P); c2, lds2 = k2(P)
    n1, n2 = "attn_kernel", "oproj_kernel"
    s = f"""; fused q-projection + attention (attn_kernel), then output projection (oproj_kernel)
; @launch kernel={n1} grid=(256,1,1) block=(256,1,1) lds={LDS1}
; @launch kernel={n2} grid=(216,1,1) block=(256,1,1) lds={lds2}
.amdgcn_target "amdgcn-amd-amdhsa--gfx950"
.text
.globl {n1}
.p2align 8
.type {n1},@function
{n1}:
{c1}
.globl {n2}
.p2align 8
.type {n2},@function
{n2}:
{c2}
.section .rodata,"a"
{kd(n1,256,256)}{kd(n2,256,256)}"""
    open(path, "w").write(s)

if __name__ == "__main__":
    P = dict(PAR)
    out = f"cdna_kernels/{NAME}.s"
    for a in sys.argv[1:]:
        k, v = a.split("=", 1)
        if k == "out": out = v
        else: P[k] = eval(v)
    build(P, out)
```
